```python
import torch

def _softmax(x, axis=-1):
    return torch.softmax(x, dim=axis)
def _gelu(x):
    return torch.nn.functional.gelu(x, approximate="tanh")
def _silu(x):
    return torch.nn.functional.silu(x)
def _sigmoid(x):
    return torch.sigmoid(x)
def _layernorm(x, axis=-1, eps=1e-5):
    m = x.mean(dim=axis, keepdim=True)
    v = x.var(dim=axis, keepdim=True, unbiased=False)
    return (x - m) / torch.sqrt(v + eps)
def _scatter_add(tgt, idx, src, axis=0):
    return tgt.clone().index_add_(axis, idx, src)
def _segment_sum(src, seg, n):
    out = torch.zeros((n,) + src.shape[1:], dtype=src.dtype)
    return out.index_add_(0, seg, src)
def _pad(x, pw):
    flat = tuple(v for pair in reversed(pw) for v in pair)
    return torch.nn.functional.pad(x, flat)

kernel_name = 'recurrent_scan__linear_attn_block__dense_activation_gelu__prompt'

def setup_inputs():

    _w = (lambda a: (lambda t: t.to(torch.bfloat16) if t.is_floating_point() else t)(torch.as_tensor(a)))
    def _A_setup():
        B, S, D = 1, 2048, 512
        return {
            "x": _w((lambda *s: torch.randn(*s, dtype=torch.bfloat16) * 0.05)(B, S, D)),
            "wqkv": _w((lambda *s: torch.randn(*s, dtype=torch.bfloat16) * 0.2)(D, 3 * D)),
            "wo": _w((lambda *s: torch.randn(*s, dtype=torch.bfloat16) * 0.2)(D, D)),
        }
    _A_in = _A_setup()

    def _B_setup():
        B, S, D, F = 1, 2048, 512, 1792
        return {
            "x": _w((lambda *s: torch.randn(*s, dtype=torch.bfloat16) * 0.05)(B, S, D)),
            "w1": _w((lambda *s: torch.randn(*s, dtype=torch.bfloat16) * 0.4)(D, F) * (D ** -0.5)),
            "b1": _w((lambda *s: torch.randn(*s, dtype=torch.bfloat16) * 12.8)(F) * 0.01),
            "w2": _w((lambda *s: torch.randn(*s, dtype=torch.bfloat16) * 0.1)(F, D) * (F ** -0.5)),
            "b2": _w((lambda *s: torch.randn(*s, dtype=torch.bfloat16) * 1.6)(D) * 0.01),
        }
    _B_in = _B_setup()

    return {
        "A_x": _A_in["x"],
        "A_wqkv": _A_in["wqkv"],
        "A_wo": _A_in["wo"],
        "B_x": _B_in["x"],
        "B_w1": _B_in["w1"],
        "B_b1": _B_in["b1"],
        "B_w2": _B_in["w2"],
        "B_b2": _B_in["b2"],
    }

def reference(A_x, A_wqkv, A_wo, B_x, B_w1, B_b1, B_w2, B_b2):
    def _A_ref(x, wqkv, wo):
        B, S, D = x.shape
        H = 32; Dh = D // H
        qkv = (lambda x, *d: x.permute(*d))((x @ wqkv).reshape(B, S, 3, H, Dh), 2, 0, 3, 1, 4)
        q, k, v = qkv[0], qkv[1], qkv[2]
        phi = lambda t: torch.where(t > 0, t + 1, torch.exp(t)) + 1e-6
        pq, pk = phi(q), phi(k)
        kv = torch.einsum("bhsd,bhse->bhde", pk, v)
        z = torch.einsum("bhsd->bhd", pk)
        num = torch.einsum("bhqd,bhde->bhqe", pq, kv)
        den = torch.einsum("bhqd,bhd->bhq", pq, z)[..., None] + 1e-6
        o = num / den
        return (lambda x, *d: x.permute(*d))(o, 0, 2, 1, 3).reshape(B, S, D) @ wo

    def _B_ref(x, w1, b1, w2, b2):
        h = torch.einsum("bsd,df->bsf", x, w1) + b1
        h = _gelu(h)
        return torch.einsum("bsf,fd->bsd", h, w2) + b2

    x = A_x
    xn = _layernorm(x, axis=-1)
    s = _A_ref(xn, A_wqkv, A_wo)
    g = _silu(_B_ref(xn, B_w1, B_b1, B_w2, B_b2))
    return x + s * g
```

```python
import re

def expand(op):
    op = op.strip()
    neg = op.lstrip('-')
    if neg.startswith('abs(') or neg.startswith('|'):
        neg = neg.replace('abs(', '').replace(')', '').replace('|', '')
    m = re.fullmatch(r'([vas])\[(\d+):(\d+)\]', neg)
    if m:
        return [f"{m.group(1)}{k}" for k in range(int(m.group(2)), int(m.group(3)) + 1)]
    if re.fullmatch(r'[vas]\d+', neg): return [neg]
    if neg in ('vcc',): return ['vcc']
    if neg in ('m0', 'exec', 'scc'): return [neg]
    return []

TRANS = ('v_exp_f32', 'v_log_f32', 'v_rcp_f32', 'v_rsq_f32', 'v_sqrt_f32', 'v_sin_f32', 'v_cos_f32')

class I:
    __slots__ = ('text', 'op', 'kind', 'rd', 'wr', 'tok', 'cost', 'passes', 'srcC', 'srcAB', 'dpp', 'widestore', 'note')
    def __init__(self, text, tok=None):
        self.text = text; self.tok = tok; self.passes = 0; self.srcC = []; self.srcAB = []; self.dpp = False; self.widestore = []
        self.note = None
        t = text.strip()
        if t.endswith(':'):
            self.op = 'label'; self.kind = 'label'; self.rd = []; self.wr = []; self.cost = 0; return
        parts = t.split(None, 1)
        op = parts[0]; self.op = op
        rest = parts[1] if len(parts) > 1 else ''
        ops = []; depth = 0; cur = ''
        for ch in rest:
            if ch == '[': depth += 1
            if ch == ']': depth -= 1
            if ch == ',' and depth == 0: ops.append(cur.strip()); cur = ''
            else: cur += ch
        if cur.strip(): ops.append(cur.strip())
        mods = ''
        if ops:
            last = ops[-1].split(None, 1)
            ops[-1] = last[0]; mods = last[1] if len(last) > 1 else ''
        E = [expand(o) for o in ops]
        flat = lambda L: [r for x in L for r in x]
        base = re.sub(r'_(e32|e64|dpp|sdwa)$', '', op)
        self.cost = 4
        if op.startswith('v_mfma'):
            self.kind = 'mfma'; self.passes = 8 if '32x32' in op else 4
            self.wr = E[0]; self.srcAB = E[1] + E[2]; self.srcC = E[3]; self.rd = self.srcAB + self.srcC; self.cost = 8
        elif op.startswith('ds_read'):
            self.kind = 'dsr'; self.wr = E[0]; self.rd = flat(E[1:])
        elif op.startswith('ds_write'):
            self.kind = 'dsw'; self.wr = []; self.rd = flat(E)
        elif op.startswith('buffer_load') or op.startswith('global_load'):
            if ' lds' in (' ' + mods):
                self.kind = 'dma'; self.wr = []; self.rd = flat(E) + ['m0']
            else:
                self.kind = 'vld'; self.wr = E[0]; self.rd = flat(E[1:])
                if 'd16' in op: self.rd += E[0]
        elif op.startswith('buffer_store') or op.startswith('global_store'):
            self.kind = 'vst'; self.wr = []; self.rd = flat(E)
            if 'x4' in op or 'x3' in op: self.widestore = E[0] if op.startswith('buffer') else E[1]
        elif op.startswith('s_load'):
            self.kind = 'smem'; self.wr = E[0]; self.rd = flat(E[1:])
        elif op in ('s_memtime', 's_memrealtime'):
            self.kind = 'smem'; self.wr = E[0]; self.rd = []
        elif op == 's_waitcnt': self.kind = 'wait'; self.rd = []; self.wr = []
        elif op == 's_nop': self.kind = 'nop'; self.rd = []; self.wr = []; self.cost = 4 * (int(ops[0], 0) + 1)
        elif op == 's_barrier': self.kind = 'barrier'; self.rd = []; self.wr = []
        elif op in ('s_endpgm', 's_sleep', 's_setprio'): self.kind = 'salu'; self.rd = []; self.wr = []
        elif op.startswith('s_branch') or op.startswith('s_cbranch'):
            self.kind = 'branch'; self.wr = []
            self.rd = ['vcc'] if 'vcc' in op else (['scc'] if 'scc' in op else [])
        elif op.startswith('s_cmp') or op.startswith('s_bitcmp'):
            self.kind = 'salu'; self.rd = flat(E); self.wr = ['scc']
        elif op.startswith('s_'):
            self.kind = 'salu'; self.wr = E[0] + (['scc'] if op not in ('s_mov_b32', 's_mov_b64', 's_mul_i32', 's_getpc_b64', 's_cselect_b32', 's_cselect_b64', 's_movk_i32', 's_mul_hi_u32') else [])
            self.rd = flat(E[1:]) + (['scc'] if 'cselect' in op or 'addc' in op else [])
        elif op.startswith('v_'):
            self.kind = 'trans' if base in TRANS else 'valu'
            if self.kind == 'trans': self.cost = 8
            self.wr = E[0]; self.rd = flat(E[1:])
            if base.startswith('v_fmac') or base.startswith('v_dot2c'): self.rd += E[0]
            if 'permlane' in base and 'swap' in base: self.wr = E[0] + E[1]; self.rd = E[0] + E[1]
            if base == 'v_cndmask_b32' and len(ops) == 3: self.rd += ['vcc']
            if base in ('v_add_co_u32', 'v_sub_co_u32', 'v_addc_co_u32'): self.wr = E[0] + E[1]; self.rd = flat(E[2:])
            if op.endswith('_dpp') or 'quad_perm' in mods or 'row_' in mods: self.dpp = True; self.rd += E[0]
        else:
            raise ValueError("unknown op " + text)

class WaitTok:
    kind = 'waittok'; cost = 4
    def __init__(self, *toks): self.toks = toks
class Drain:
    kind = 'drain'; cost = 0

def flatten(x):
    out = []
    for e in x:
        if isinstance(e, (list, tuple)): out += flatten(e)
        elif isinstance(e, str): out += [I(l) for l in e.split('\n') if l.strip()]
        elif e is None: pass
        else: out.append(e)
    return out

def atoms(x):
    return [flatten([a]) for a in x]

def interleave(main, *sides):
    main = atoms(main)
    n = len(main)
    slots = [[] for _ in range(n)]
    for s in sides:
        at, lo, hi = s if isinstance(s, tuple) else (s, 0.0, 1.0)
        at = atoms(at)
        if not at: continue
        tot = sum(sum(i.cost for i in a) for a in at)
        acc = 0.0
        for a in at:
            c = sum(i.cost for i in a)
            pos = lo + (hi - lo) * (acc + 0.5 * c) / tot
            acc += c
            k = min(n - 1, max(0, int(pos * n)))
            slots[k].append(a)
    out = []
    for k in range(n):
        out.append(main[k])
        out += slots[k]
    return out

class Finalizer:
    def __init__(self):
        self.out = []
        self.vmq = []
        self.lgq = []
        self.smem = []
        self.hist = []
        self.stats = {'nop_states': 0, 'waits': 0, 'n': 0}
        self.maxvm = 0
    def _emit(self, ins):
        self.out.append(ins); self.stats['n'] += 1
        w = 1
        if ins.kind == 'nop': w = ins.cost // 4
        if ins.kind == 'label': w = 0
        self.hist.append((ins, w))
        if len(self.hist) > 40: self.hist.pop(0)
    def _need(self, q, pred):
        idx = -1
        for k, e in enumerate(q):
            if pred(e): idx = k
        return None if idx < 0 else len(q) - 1 - idx
    def _wait(self, vm, lg):
        if vm is None and lg is None: return
        parts = []
        if vm is not None:
            assert vm <= 63
            parts.append(f"vmcnt({vm})"); del self.vmq[:len(self.vmq) - vm]
        if lg is not None:
            lg = min(lg, 14)
            parts.append(f"lgkmcnt({lg})"); del self.lgq[:max(0, len(self.lgq) - lg)]
            if lg == 0: self.smem = []
        self._emit(I("s_waitcnt " + " ".join(parts))); self.stats['waits'] += 1
    def _hazard(self, ins):
        need = 0; dist = 0
        R = set(ins.rd); W = set(ins.wr)
        isvalu = ins.kind in ('valu', 'trans')
        ismem = ins.kind in ('vld', 'vst', 'dma', 'dsr', 'dsw')
        for prev, w in reversed(self.hist):
            req = 0
            pw = set(prev.wr)
            if prev.kind in ('valu', 'trans'):
                vw = {r for r in pw if r[0] in 'va' and r != 'vcc'}
                sw = {r for r in pw if r[0] == 's' or r == 'vcc'}
                if ins.kind == 'mfma' and vw & R: req = max(req, 2)
                if isvalu and 'permlane' in ins.op and vw & R: req = max(req, 2)
                if isvalu and ins.dpp and vw & R: req = max(req, 2)
                if isvalu and ('readfirstlane' in ins.op or 'readlane' in ins.op) and vw & R: req = max(req, 1)
                if prev.kind == 'trans' and vw & R and (isvalu or ins.kind == 'mfma' or ismem): req = max(req, 1)
                if isvalu and sw & R: req = max(req, 2)
                if ins.kind in ('vld', 'vst', 'dma') and sw & R: req = max(req, 5)
                if ins.kind in ('salu', 'smem', 'branch') and sw & R: req = max(req, 2)
            if prev.kind == 'mfma':
                p8 = prev.passes == 8
                if ins.kind == 'mfma':
                    if pw & set(ins.srcAB): req = max(req, 12 if p8 else 8)
                    if pw & set(ins.srcC):
                        if not (ins.srcC == prev.wr and ins.passes == prev.passes): req = max(req, 10 if p8 else 6)
                    elif pw & W: req = max(req, 10 if p8 else 6)
                elif isvalu:
                    if pw & (R | W): req = max(req, 12 if p8 else 8)
                    if set(prev.srcC) & W: req = max(req, 7 if p8 else 3)
                elif ismem:
                    if pw & (R | W): req = max(req, 12 if p8 else 8)
                    if set(prev.srcC) & W: req = max(req, 7 if p8 else 3)
            if prev.kind == 'salu' and 'm0' in pw and ins.kind == 'dma': req = max(req, 1)
            if prev.widestore and set(prev.widestore) & W: req = max(req, 2)
            if req > dist: need = max(need, req - dist)
            dist += w
            if dist > 14: break
        while need > 0:
            k = min(need, 16)
            self._emit(I(f"s_nop {k-1}")); self.stats['nop_states'] += k; need -= k
    def add(self, ins):
        if ins.kind == 'drain':
            self.vmq = []; return
        if ins.kind == 'waittok':
            toks = set(ins.toks)
            vm = self._need(self.vmq, lambda e: e[1] in toks)
            lg = self._need(self.lgq, lambda e: e[1] in toks)
            self._wait(vm, lg); return
        RW = set(ins.rd) | set(ins.wr)
        vm = self._need(self.vmq, lambda e: RW & e[0])
        lg = self._need(self.lgq, lambda e: RW & e[0])
        if RW & set(self.smem): lg = 0
        if lg is not None and self.smem: lg = 0
        if ins.kind in ('vld', 'vst', 'dma') and len(self.vmq) >= 63 and vm is None: vm = 62
        if ins.kind == 'wait':
            m = re.search(r'vmcnt\((\d+)\)', ins.text)
            if m: del self.vmq[:max(0, len(self.vmq) - int(m.group(1)))]
            m = re.search(r'lgkmcnt\((\d+)\)', ins.text)
            if m:
                assert int(m.group(1)) == 0 or not self.smem
                del self.lgq[:max(0, len(self.lgq) - int(m.group(1)))]
                if int(m.group(1)) == 0: self.smem = []
        self._wait(vm, lg)
        self._hazard(ins)
        self._emit(ins)
        if ins.kind in ('vld', 'vst', 'dma'):
            self.vmq.append((set(ins.wr), ins.tok)); self.maxvm = max(self.maxvm, len(self.vmq))
        elif ins.kind in ('dsr', 'dsw'): self.lgq.append((set(ins.wr), ins.tok))
        elif ins.kind == 'smem': self.smem += ins.wr
    def run(self, prog):
        for ins in flatten(prog): self.add(ins)
        return self.out
```

```python
import sys, math, struct
from asmlib import *

NAME = "recurrent_scan__linear_attn_block__dense_activation_gelu__prompt_kernel"
def f2u(x): return struct.unpack('<I', struct.pack('<f', x))[0]
def fl(x): return hex(f2u(x))
LOG2E = 1.4426950408889634
GK0 = math.sqrt(2.0 / math.pi); GK1 = 0.044715
C0 = -2 * LOG2E * GK0; C1 = -2 * LOG2E * GK0 * GK1

WS_STATS = 0x1000; WS_CSUM = 0x10000; WS_FH = 0x90000; WS_FKV = 0xB0000; WS_FO = 0xD0000
WS_KVP = 0x100000; WS_O = 0x200000; WS_H = 0x400000; WS_PROF = 0xC00000; WS_SIZE = 0x1000000
K = 1024
L_AUG = 144 * K
L_STAT = 148 * K
L_ZF = 149 * K
L_SCR = 150 * K
L_SCR2 = 136 * K
L_WO = 64 * K; L_O = 0; L_GS = 64 * K; L_XT = 128 * K
def unit_lds(n):
    r, w = divmod(n, 4)
    return {0: 96, 1: 112, 2: 128, 3: 64, 4: 80, 5: 112}[r] * K + w * 4 * K
UNITS = [('k',0),('v',0),('q',0),('k',1),('k',2),('k',3),('k',4),('k',5),('k',6),('k',7),('v',1),('v',2),
         ('v',3),('v',4),('v',5),('v',6),('v',7),('q',1),('q',2),('q',3),('q',4),('q',5),('q',6),('q',7)]
UIDX = {u: n for n, u in enumerate(UNITS)}
GCOL = {'q': 0, 'k': 1, 'v': 2}
GAUG = {'k': 4, 'v': 5, 'q': 6}

sX, sWQ, sW1, sW2, sWO, sWS, sOUT, sB1, sB2 = 4, 8, 12, 16, 20, 24, 28, 32, 36
sTAG = 40; sW = 42; sI = 43; sJ = 44; sRT = 45; sCT = 46; sROT = 47
sOW2 = 48; sOH = 55
sW4K = 62; sT32 = 63
sRX = 68; sRW1 = 76; sRQ = 84
sT0, sT1, sT2, sT3 = 90, 91, 92, 93
sM16 = 94; sMHI = 96
sHALF = 64; sA = 65; sPROF = 66; sCNT = 67
sTIME = 98
def srd(s): return f"s[{s}:{s+3}]"
vLANE, vL16 = 0, 1
vTRA = [2, 3, 4]
vWQ = [5, 6, 7, 8]; vXS = [9, 10, 11, 12]; vW1 = [13, 14, 15, 16]; vXR = [17, 18, 19, 20]; vW2 = [21, 22, 23, 24]
vTRB = [25, 26]
vC0, vC1, vSTD = 27, 28, 29
vT30, vT31 = 30, 31
WB = 32; ACC = 64; XF = 128
vXAUG = 9
def vr(b, n=4): return f"v[{b}:{b+n-1}]"
def ar(b, n=4): return f"a[{b}:{b+n-1}]"
def xf(s): return vr(XF + 4 * s)

class Cfg:
    prof = False
    rot_mode = 1
    rot2_mode = 0
cfg = Cfg()

slow = []
_lab = [0]
def lab(p):
    _lab[0] += 1; return f"L_{p}{_lab[0]}"

def tr_pair(dst, isa, addr, second, areg=None, tok=None):
    R = (lambda b: ar(b, 2)) if isa else (lambda b: vr(b, 2))
    if areg is None:
        k = addr // 65536
        assert (addr + second) // 65536 == k
        areg = vTRA[k]; off = addr - 65536 * k
    else: off = addr
    return [I(f"ds_read_b64_tr_b16 {R(dst)}, v{areg} offset:{off}", tok),
            I(f"ds_read_b64_tr_b16 {R(dst+2)}, v{areg} offset:{off+second}", tok)]

def dma4(m0expr, vregs, s, soff, tok, extra=''):
    out = []
    for p in range(4):
        v = vregs[p] if isinstance(vregs, list) else vregs
        ins = I(f"buffer_load_dwordx4 v{v}, {srd(s)}, {soff} offen offset:{1024*p} {extra}lds", tok)
        out.append([m0expr, ins] if p == 0 else [ins])
    return out

def mfma(d, a, b, c=None, n=16):
    return I(f"v_mfma_f32_32x32x16_bf16 {d}, {a}, {b}, {c if c is not None else d}")

def stamp(k):
    if not cfg.prof: return []
    a = 'a254' if k <= 11 else 'a0'
    return [f"s_memtime s[{sTIME}:{sTIME+1}]", "s_waitcnt lgkmcnt(0)", f"v_accvgpr_write_b32 {a}, s{sTIME}",
            f"buffer_store_dword {a}, off, {srd(sWS)}, s{sPROF} offset:{4*k}"]

def poll_check(load_texts, tagregs, name):
    ls, lr = lab('slow_' + name), lab('ret_' + name)
    chk = []
    for n, t in enumerate(tagregs):
        chk.append(f"v_cmp_ne_u64 vcc, s[{sTAG}:{sTAG+1}], {vr(t,2)}")
        chk.append(f"s_cbranch_vccnz {ls}")
    body = [f"{ls}:", f"s_mov_b32 s{sCNT}, 0", f"{ls}_loop:", "s_sleep 1"] + load_texts + ["s_waitcnt vmcnt(0)", f"s_add_u32 s{sCNT}, s{sCNT}, 1",
            f"s_cmp_ge_u32 s{sCNT}, 0x8000", f"s_cbranch_scc1 {lr}"]
    for t in tagregs:
        body += [f"v_cmp_ne_u64 vcc, s[{sTAG}:{sTAG+1}], {vr(t,2)}", "s_nop 1", f"s_cbranch_vccnz {ls}_loop"]
    body += [f"s_branch {lr}"]
    slow.append("\n".join(body))
    return chk + [f"{lr}:"]

def flag_store(tok, soff_code, sreg, t):
    return [WaitTok(*tok), soff_code, f"v_mov_b32 v{t}, s{sTAG}", f"v_mov_b32 v{t+1}, s{sTAG+1}", "s_mov_b64 exec, 1",
            f"buffer_store_dwordx2 {vr(t,2)}, off, {srd(sWS)}, s{sreg} sc1", "s_mov_b64 exec, -1"]

def prologue():
    P = []
    A = P.append
    A("s_cmp_ge_u32 s2, 256\ns_cbranch_scc1 L_end")
    A("s_load_dwordx16 s[48:63], s[0:1], 0\ns_load_dwordx2 s[64:65], s[0:1], 64\ns_load_dwordx2 s[66:67], s[0:1], 80")
    A("s_getpc_b64 s[68:69]\nL_pc:")
    A(f"v_lshlrev_b32 v1, 7, v0\nv_min_u32 v1, L_end-L_pc, v1\nglobal_load_dword a255, v1, s[68:69]")
    A(f"v_lshrrev_b32 v2, 6, v0\nv_and_b32 v0, 63, v0\nv_readfirstlane_b32 s{sW}, v2")
    A(f"s_and_b32 s{sT0}, s2, 7\ns_lshr_b32 s{sT1}, s2, 3")
    A(f"s_lshr_b32 s70, s{sT0}, 2\ns_and_b32 s71, s{sT1}, 7")
    A(f"s_lshl_b32 s{sI}, s70, 3\ns_add_u32 s{sI}, s{sI}, s71")
    A(f"s_and_b32 s{sJ}, s{sT0}, 3\ns_lshl_b32 s{sJ}, s{sJ}, 2\ns_lshr_b32 s{sT2}, s{sT1}, 3\ns_add_u32 s{sJ}, s{sJ}, s{sT2}")
    A(f"s_lshl_b32 s{sRT}, s{sT0}, 2\ns_and_b32 s{sT2}, s{sT1}, 3\ns_add_u32 s{sRT}, s{sRT}, s{sT2}\ns_lshr_b32 s{sCT}, s{sT1}, 2")
    if cfg.rot_mode == 0:   A(f"s_mov_b32 s{sROT}, s71")
    elif cfg.rot_mode == 1: A(f"s_and_b32 s{sT2}, s{sT0}, 3\ns_lshl_b32 s{sT2}, s{sT2}, 1\ns_add_u32 s{sROT}, s71, s{sT2}")
    elif cfg.rot_mode == 2: A(f"s_and_b32 s{sT2}, s{sJ}, 3\ns_lshl_b32 s{sT2}, s{sT2}, 1\ns_add_u32 s{sROT}, s71, s{sT2}")
    if cfg.rot2_mode == 0:
        A(f"s_add_u32 s72, s{sCT}, s{sT0}")
    elif cfg.rot2_mode == 1:
        A(f"s_and_b32 s{sT2}, s{sT1}, 3\ns_lshl_b32 s{sT2}, s{sT2}, 1\ns_add_u32 s72, s{sCT}, s{sT0}\ns_add_u32 s72, s72, s{sT2}")
    elif cfg.rot2_mode == 2:
        A(f"s_mov_b32 s72, s{sCT}")
    A(f"s_mul_i32 s{sT2}, s72, 37\ns_lshr_b32 s{sT2}, s{sT2}, 8\ns_mul_i32 s{sT2}, s{sT2}, 7\ns_sub_u32 s72, s72, s{sT2}")
    A(f"v_lshlrev_b32 v{vL16}, 4, v0")
    A(f"v_bfe_u32 v30, v0, 2, 2\nv_lshlrev_b32 v30, 6, v30\nv_bfe_u32 v31, v0, 4, 1\nv_lshl_or_b32 v30, v31, 5, v30\nv_and_b32 v29, 3, v0\nv_lshl_or_b32 v30, v29, 3, v30"
      .replace("v31,", "v28,"))
    A(f"v_lshrrev_b32 v28, 5, v0")
    A(f"v_lshl_or_b32 v{vTRA[0]}, v28, 9, v30\nv_add_u32 v{vTRA[1]}, 0x10000, v{vTRA[0]}\nv_add_u32 v{vTRA[2]}, 0x20000, v{vTRA[0]}")
    A(f"v_lshl_or_b32 v{vTRB[0]}, v28, 8, v30")
    A(f"s_lshl_b32 s{sT3}, s{sI}, 2\ns_add_u32 s{sT3}, s{sT3}, s{sW}")
    A(f"s_lshl_b32 s{sT2}, s{sT3}, 15")
    A(f"v_lshrrev_b32 v27, 3, v0\nv_lshlrev_b32 v27, 12, v27\nv_and_b32 v26, 7, v0\nv_lshlrev_b32 v{vXS[0]}, 2, v28\nv_xor_b32 v26, v26, v{vXS[0]}")
    A(f"v_lshl_or_b32 v27, v26, 4, v27\nv_add_u32 v{vXS[0]}, s{sT2}, v27")
    for p in (1, 2, 3): A(f"v_xor_b32 v{vXS[p]}, {16*p}, v{vXS[0]}")
    A(f"s_mul_i32 s{sT2}, s{sJ}, 192\ns_lshl_b32 s73, s{sW}, 6\ns_add_u32 s{sT2}, s{sT2}, s73")
    A(f"s_lshl_b32 s73, s{sJ}, 5\ns_add_u32 s73, s73, 3072\ns_cmp_eq_u32 s{sW}, 3\ns_cselect_b32 s74, s73, s{sT2}")
    A(f"s_cselect_b32 s75, 0x8000000, 0")
    A(f"v_lshrrev_b32 v27, 2, v0\nv_mul_u32_u24 v26, 3584, v27\nv_lshl_add_u32 v26, v29, 4, v26\nv_add_u32 v26, s74, v26")
    A(f"v_lshrrev_b32 v{vW1[0]}, 1, v29\nv_mul_lo_u32 v{vW1[0]}, v{vW1[0]}, s75\nv_add_u32 v{vW1[0]}, v{vW1[0]}, v26")
    for p in (1, 2, 3): A(f"v_add_u32 v{vW1[p]}, {56320*p}, v{vW1[0]}")
    A(f"s_lshl_b32 s{sT2}, s{sI}, 7\ns_lshl_b32 s73, s{sJ}, 3\ns_add_u32 s{sT2}, s{sT2}, s73\ns_lshl_b32 s73, s{sW}, 1\ns_add_u32 s73, s{sT2}, s73")
    A(f"v_add_u32 v70, s73, v28\nv_and_b32 v71, 31, v0\nv_lshlrev_b32 v71, 4, v71\nv_lshl_or_b32 v72, v70, 10, v71")
    for b in range(8):
        A(f"s_add_u32 s{sT2}, s{sROT}, {b}\ns_and_b32 s{sT2}, s{sT2}, 7\ns_mul_i32 s{sRW1+b}, s{sT2}, 229376")
    for s, n in ((sX, 2097152), (sWQ, 1572864), (sW1, 1835008), (sW2, 1835008), (sWO, 524288), (sWS, WS_SIZE), (sOUT, 2097152), (sB1, 3584), (sB2, 1024)):
        A(f"s_mov_b32 s{s+2}, {n}\ns_mov_b32 s{s+3}, 0x20000")
    A(f"s_lshl_b32 s{sT0}, s{sW}, 12")
    A("s_waitcnt lgkmcnt(0)")
    A(f"s_mov_b32 s{sX}, s48\ns_mov_b32 s{sX+1}, s49")
    A(f"buffer_load_dwordx4 v[64:67], v72, {srd(sX)}, 0 offen")
    A(f"s_load_dwordx2 s[{sTAG}:{sTAG+1}], s[66:67], 0")
    A(f"buffer_load_dwordx4 v[76:79], v72, {srd(sX)}, 0 offen offset:512")
    A(f"s_mov_b32 s{sW1}, s56\ns_mov_b32 s{sW1+1}, s57")
    A(f"s_and_b32 s{sT2}, s{sROT}, 7\ns_lshl_b32 s{sT2}, s{sT2}, 7")
    d0 = dma4(f"s_add_u32 m0, s{sT0}, 0", vXS, sX, f"s{sT2}", 'A0') + dma4(f"s_add_u32 m0, s{sT0}, {16*K}", vW1, sW1, f"s{sRW1}", 'A0')
    rest = []
    R = rest.append
    for s, p in ((sWQ, 50), (sWO, 52), (sB1, 58), (sW2, 60), (sB2, 62), (sOUT, 64), (sWS, 66)):
        R(f"s_mov_b32 s{s}, s{p}\ns_mov_b32 s{s+1}, s{p+1}")
    R(f"s_mov_b32 s{sHALF}, s70\ns_mov_b32 s{sA}, s71\ns_mov_b32 s{sW4K}, s{sT0}\ns_mov_b32 s{sT32}, s{sT3}")
    R(f"s_mov_b32 s{sT1}, s72\ns_mov_b32 s{sT3}, s74")
    P += interleave(d0, rest)
    A(f"s_mov_b32 s{sCNT}, s73")
    for b in range(8):
        A(f"s_add_u32 s{sT2}, s{sROT}, {b}\ns_and_b32 s{sT2}, s{sT2}, 7\ns_lshl_b32 s{sRX+b}, s{sT2}, 7")
    return P

def late_setup():
    P = []; A = P.append
    A(f"v_lshrrev_b32 v30, 2, v0\nv_and_b32 v31, 3, v0\nv_mul_u32_u24 v{vWQ[0]}, 3072, v30\nv_lshl_add_u32 v{vWQ[0]}, v31, 4, v{vWQ[0]}")
    for p in (1, 2, 3): A(f"v_add_u32 v{vWQ[p]}, {48128*p}, v{vWQ[0]}")
    A(f"s_lshl_b32 s{sT0}, s{sW}, 3")
    for r in range(6):
        code = 0
        for w in range(4):
            g, b = UNITS[4*r+w]; code |= (GCOL[g] * 8 + b) << (8*w)
        A(f"s_lshr_b32 s{sT2}, {hex(code)}, s{sT0}\ns_add_u32 s{sRQ+r}, s{sT2}, s{sROT}\ns_and_b32 s{sRQ+r}, s{sRQ+r}, 7\ns_mul_i32 s{sRQ+r}, s{sRQ+r}, 196608")
        A(f"s_bfe_u32 s{sT2}, s{sT2}, 0x20003\ns_lshl_b32 s{sT2}, s{sT2}, 10\ns_add_u32 s{sRQ+r}, s{sRQ+r}, s{sT2}\ns_lshl_b32 s{sT2}, s{sJ}, 6\ns_add_u32 s{sRQ+r}, s{sRQ+r}, s{sT2}")
    return P

def xr_setup():
    P = []; A = P.append
    A(f"v_and_b32 v30, 3, v0\nv_lshrrev_b32 v31, 5, v0\nv_xor_b32 v31, v31, v30\nv_bfe_u32 v{vXR[1]}, v0, 4, 1\nv_lshlrev_b32 v{vXR[1]}, 2, v{vXR[1]}\nv_xor_b32 v31, v31, v{vXR[1]}")
    A(f"v_lshlrev_b32 v31, 4, v31\nv_lshl_or_b32 v31, v30, 10, v31\nv_bfe_u32 v30, v0, 2, 3\nv_lshl_or_b32 v31, v30, 7, v31\nv_add_u32 v{vXR[0]}, s{sW4K}, v31")
    for t in (1, 2, 3): A(f"v_xor_b32 v{vXR[t]}, {32*t}, v{vXR[0]}")
    return P

def p2_setup():
    P = []; A = P.append
    A(f"v_bfe_u32 v30, v0, 2, 3\nv_lshlrev_b32 v30, 10, v30\nv_lshrrev_b32 v31, 5, v0\nv_lshl_or_b32 v30, v31, 6, v30\nv_and_b32 v31, 3, v0\nv_lshl_or_b32 v30, v31, 4, v30")
    A(f"s_lshl_b32 s{sT0}, s{sCT}, 7\nv_add_u32 v{vW2[0]}, s{sT0}, v30")
    for p in (1, 2, 3): A(f"v_add_u32 v{vW2[p]}, {7168*p}, v{vW2[0]}")
    A(f"s_and_b32 s{sT0}, s{sW}, 1\ns_lshl_b32 s{sT0}, s{sT0}, 9\ns_add_u32 s{sT0}, s{sT0}, s{sW4K}\nv_add_u32 v{vTRB[0]}, s{sT0}, v{vTRB[0]}\nv_xor_b32 v{vTRB[1]}, 512, v{vTRB[0]}")
    A(f"s_mul_i32 s{sT0}, s{sW}, 28")
    A(f"s_mul_i32 s{sT2}, s{sRT}, {2*112*1024}\ns_add_u32 s{sT2}, s{sT2}, {WS_H}")
    for c in range(7):
        A(f"s_add_u32 s{sOH+c}, s{sT1}, {c}\ns_cmp_ge_u32 s{sOH+c}, 7\ns_cselect_b32 s{sOW2+c}, 7, 0\ns_sub_u32 s{sOH+c}, s{sOH+c}, s{sOW2+c}")
        A(f"s_lshl_b32 s{sOH+c}, s{sOH+c}, 2\ns_add_u32 s{sOH+c}, s{sOH+c}, s{sT0}\ns_lshl_b32 s{sOW2+c}, s{sOH+c}, 14\ns_lshl_b32 s{sOH+c}, s{sOH+c}, 10\ns_add_u32 s{sOH+c}, s{sOH+c}, s{sT2}")
    A(f"s_mov_b32 s{sM16}, 0xffff0000\ns_mov_b32 s{sM16+1}, 0xffff0000\ns_mov_b32 s{sMHI}, 0\ns_mov_b32 s{sMHI+1}, -1")
    return P

def allreduce32(v, t):
    return [f"v_add_f32_dpp v{v}, v{v}, v{v} quad_perm:[1,0,3,2] row_mask:0xf bank_mask:0xf",
            f"v_add_f32_dpp v{v}, v{v}, v{v} quad_perm:[2,3,0,1] row_mask:0xf bank_mask:0xf",
            f"v_add_f32_dpp v{v}, v{v}, v{v} row_half_mirror row_mask:0xf bank_mask:0xf",
            f"v_add_f32_dpp v{v}, v{v}, v{v} row_mirror row_mask:0xf bank_mask:0xf",
            f"v_mov_b32 v{t}, v{v}", f"v_permlane16_swap_b32 v{v}, v{t}", f"v_add_f32 v{v}, v{v}, v{t}"]

def stats():
    P = []; A = P.append
    src = [64, 65, 66, 67, 76, 77, 78, 79]
    for n, r in enumerate(src):
        A(f"v_lshlrev_b32 v{80+2*n}, 16, v{r}"); A(f"v_and_b32 v{81+2*n}, 0xffff0000, v{r}")
    A("v_add_f32 v96, v80, v81"); A("v_add_f32 v97, v82, v83")
    for n in range(2, 8): A(f"v_add_f32 v{96+n%2}, v{96+n%2}, v{80+2*n}"); A(f"v_add_f32 v{96+n%2}, v{96+n%2}, v{81+2*n}")
    A("v_add_f32 v96, v96, v97")
    P += allreduce32(96, 97)
    A(f"v_mul_f32 v100, {fl(1/512)}, v96")
    for n in range(16): A(f"v_sub_f32 v{80+n}, v{80+n}, v100")
    A("v_mul_f32 v96, v80, v80"); A("v_mul_f32 v97, v81, v81")
    for n in range(2, 16): A(f"v_fmac_f32 v{96+n%2}, v{80+n}, v{80+n}")
    A("v_add_f32 v96, v96, v97")
    P += allreduce32(96, 97)
    A(f"v_mov_b32 v97, {fl(1e-5)}"); A(f"v_fmac_f32 v97, {fl(1/512)}, v96"); A("v_sqrt_f32 v101, v97")
    A(f"s_mul_i32 s{sTAG}, s{sTAG}, 1664525\ns_add_u32 s{sTAG}, s{sTAG}, 1013904223\ns_mul_i32 s{sTAG+1}, s{sTAG+1}, 22695477\ns_add_u32 s{sTAG+1}, s{sTAG+1}, 1")
    A(f"v_mov_b32 v102, s{sTAG}"); A(f"v_mov_b32 v103, s{sTAG+1}")
    A(f"v_lshlrev_b32 v70, 4, v70"); A(f"v_add_u32 v70, {WS_STATS}, v70")
    A(["s_mov_b32 exec_lo, 1", "s_mov_b32 exec_hi, 1",
       f"buffer_store_dwordx4 v[100:103], v70, {srd(sWS)}, 0 offen sc1", "s_mov_b64 exec, -1"])
    return [p for p in P if p is not None]

def blockA_dma(b):
    slot = b % 3
    return dma4(f"s_add_u32 m0, s{sW4K}, {slot*32*K}", vXS, sX, f"s{sRX+b}", f'A{b}') + \
           dma4(f"s_add_u32 m0, s{sW4K}, {slot*32*K+16*K}", vW1, sW1, f"s{sRW1+b}", f'A{b}')
def round_dma(r):
    return dma4(f"s_add_u32 m0, s{sW4K}, {unit_lds(4*r)}", vWQ, sWQ, f"s{sRQ+r}", f'R{r}')
def x_reads(b):
    slot = b % 3
    if slot < 2: return [f"ds_read_b128 {xf(4*b+t)}, v{vXR[t]} offset:{slot*32*K}" for t in range(4)]
    return [[f"v_add_u32 v{vT30}, 0x10000, v{vXR[t]}", f"ds_read_b128 {xf(4*b+t)}, v{vT30}"] for t in range(4)]
def wA(b, t, g):
    return tr_pair(WB + 16 * (t % 2) + 4 * g, False, (b % 3) * 32 * K + 16 * K + g * 4 * K + t * K, 256, tok=f'WA{b}')

def colsum_part(which):
    P = []; A = P.append
    base = (16 * K if which == 0 else 96 * K - 65536); areg = vTRA[0] if which == 0 else vTRA[1]
    A(f"v_add_u32 v{vT30}, s{sW4K}, v{areg}")
    if which == 0:
        A(f"v_mov_b32 v{vT31}, 0x3f803f80")
        for n in range(4): A(f"v_accvgpr_write_b32 a{64+n}, v{vT31}")
    for t in range(4): A(tr_pair(32 + 4 * t, True, base + t * K, 256, areg=vT30, tok='WA0' if which == 0 else None))
    for t in range(4): A(mfma(ar(16 * which, 16), ar(64), ar(32 + 4 * t), '0' if t == 0 else None))
    return P
def colsum_publish():
    t = 100
    P = []; A = P.append
    A(f"s_lshl_b32 s{sT0}, s{sHALF}, 4\ns_add_u32 s{sT0}, s{sT0}, s{sJ}\ns_lshl_b32 s{sT0}, s{sT0}, 3\ns_add_u32 s{sT0}, s{sT0}, s{sA}\ns_lshl_b32 s{sT0}, s{sT0}, 11")
    A(f"s_lshl_b32 s{sT2}, s{sW}, 9\ns_add_u32 s{sT0}, s{sT0}, s{sT2}\ns_add_u32 s{sT0}, s{sT0}, {WS_CSUM}")
    A(f"v_accvgpr_read_b32 v28, a0"); A(f"v_accvgpr_read_b32 v29, a16"); A(f"v_mov_b32 v30, s{sTAG}"); A(f"v_mov_b32 v31, s{sTAG+1}")
    A(["s_mov_b32 exec_hi, 0", f"buffer_store_dwordx4 v[28:31], v{vL16}, {srd(sWS)}, s{sT0} offen sc1", "s_mov_b32 exec_hi, -1"])
    return P

GA = 68
def build():
    P = []
    P += prologue()
    if cfg.prof:
        P += [f"s_lshl_b32 s{sPROF}, s2, 2\ns_add_u32 s{sPROF}, s{sPROF}, s{sW}\ns_lshl_b32 s{sPROF}, s{sPROF}, 7\ns_add_u32 s{sPROF}, s{sPROF}, {WS_PROF}"]
        P += stamp(0)
    P += interleave(xr_setup() + late_setup() + stats(), (blockA_dma(1), 0.3, 1.0))
    P += stamp(1)
    P += [WaitTok('A0')] + x_reads(0) + ["s_barrier"]
    P += stamp(2)
    P += [wA(0, 0, g) for g in range(4)]
    for b in range(8):
        main = []
        for t in range(4):
            for g in range(4):
                m = mfma(vr(ACC + 16 * g, 16), vr(WB + 16 * (t % 2) + 4 * g), xf(4 * b + t), '0' if (b == 0 and t == 0) else None)
                if t < 3: main.append([wA(b, t + 1, g), m])
                elif b < 7:
                    if g < 2: main.append([m])
                    elif g == 2:
                        toks = [f'A{b+1}'] + (['R0'] if b == 0 else []) + (['AUGW'] if b == 6 else [])
                        main.append([WaitTok(*toks), WaitTok(f'WA{b}'), x_reads(b + 1), "s_barrier", wA(b + 1, 0, 0), wA(b + 1, 0, 1), m])
                    else: main.append([wA(b + 1, 0, 2), wA(b + 1, 0, 3), m])
                else:
                    main.append([f"ds_read_b128 {vr(WB+4*g)}, v{vT30} offset:{g*512}", m])
        sides = []
        if b == 0: sides += [(round_dma(0) + blockA_dma(2), 0.0, 0.8), (colsum_part(0), 0.0, 0.7)]
        elif b <= 5: sides += [(blockA_dma(b + 2), 0.0, 0.8)]
        elif b == 6: sides += [(round_dma(1) + round_dma(2), 0.0, 0.8)]
        else: sides += [(round_dma(3) + round_dma(4), 0.0, 1.0)]
        if b == 1: sides += [(colsum_part(1) + colsum_publish(), 0.0, 0.8)]
        if b == 2: sides += [(p2_setup(), 0.0, 0.8)]
        if b == 4: sides += [(early_gather_issue(), 0.0, 0.5)]
        if b == 6: sides += [(early_gather_process(), 0.0, 0.8)]
        if b == 7: sides += [([f"v_and_b32 v{vT30}, 31, v0\nv_lshlrev_b32 v{vT30}, 4, v{vT30}\nv_add_u32 v{vT30}, {L_AUG}, v{vT30}"], 0.0, 0.1)]
        P += interleave(main, *sides)
        if b in (0, 3): P += stamp(3 if b == 0 else 4)
    P += stamp(5)
    P += stage_B()
    P += stage_C()
    P += stage_D()
    return P

sG0, sG1 = 100, 101
def early_gather_issue():
    P = []; A = P.append
    A(f"s_lshl_b32 s{sT0}, s{sHALF}, 4\ns_add_u32 s{sT0}, s{sT0}, s{sJ}\ns_lshl_b32 s{sT0}, s{sT0}, 14\ns_lshl_b32 s{sT2}, s{sW}, 9\ns_add_u32 s{sT0}, s{sT0}, s{sT2}\ns_add_u32 s{sG0}, s{sT0}, {WS_CSUM}")
    A(f"s_lshl_b32 s{sT0}, s{sT32}, 9\ns_add_u32 s{sG1}, s{sT0}, {WS_STATS}")
    A(f"v_and_b32 v27, 31, v0\nv_lshlrev_b32 v27, 4, v27\nv_lshrrev_b32 v28, 5, v0\nv_lshl_or_b32 v28, v28, 12, v27\nv_add_u32 v29, 8192, v28")
    for t in EG_LOADS(): A(t)
    A(f"v_and_b32 v30, 31, v0\nv_lshlrev_b32 v30, 1, v30\nv_add_u32 v30, s{sT3}, v30")
    A(f"buffer_load_ushort a{GA+20}, v30, {srd(sB1)}, 0 offen")
    return P
def EG_LOADS():
    L = [f"buffer_load_dwordx4 {ar(GA+16)}, v27, {srd(sWS)}, s{sG1} offen sc1"]
    for q in range(4):
        L.append(f"buffer_load_dwordx4 {ar(GA+4*q)}, v{28 + (q >> 1)}, {srd(sWS)}, s{sG0} offen offset:{2048*(q&1)} sc1")
    return L
def early_gather_process():
    P = []; A = P.append
    T = 9
    ls, lr = lab('slow_eg'), lab('ret_eg')
    chk = []
    def checks(target):
        out = []
        for q in range(5):
            out += [f"v_accvgpr_read_b32 v{10+2*(q%2)}, a{GA+4*q+2}",
                    f"v_accvgpr_read_b32 v{11+2*(q%2)}, a{GA+4*q+3}", "s_nop 0",
                    f"v_cmp_ne_u64 vcc, s[{sTAG}:{sTAG+1}], {vr(10+2*(q%2),2)}", "s_nop 1", f"s_cbranch_vccnz {target}"]
        return out
    A(checks(ls) + [f"{lr}:"])
    slow.append("\n".join([f"{ls}:", f"s_mov_b32 s{sCNT}, 0", f"{ls}_loop:", "s_sleep 1"] + EG_LOADS() +
                          ["s_waitcnt vmcnt(0)", f"s_add_u32 s{sCNT}, s{sCNT}, 1", f"s_cmp_ge_u32 s{sCNT}, 0x8000", f"s_cbranch_scc1 {lr}"] +
                          checks(f"{ls}_loop") + [f"s_branch {lr}"]))
    for c in range(2):
        A(f"v_accvgpr_read_b32 v14, a{GA+c}"); A(f"v_accvgpr_read_b32 v15, a{GA+4+c}"); A(f"v_accvgpr_read_b32 v16, a{GA+8+c}"); A(f"v_accvgpr_read_b32 v13, a{GA+12+c}")
        A("v_add_f32 v14, v14, v15"); A("v_add_f32 v16, v16, v13"); A("v_add_f32 v14, v14, v16")
        A("v_mov_b32 v15, v14"); A("v_permlane32_swap_b32 v14, v15"); A("v_add_f32 v14, v14, v15")
        A("v_mov_b32 v13, 0")
        A("v_cvt_pk_bf16_f32 v12, v14, v13"); A("v_lshlrev_b32 v15, 16, v12"); A("v_sub_f32 v15, v14, v15"); A("v_cvt_pk_bf16_f32 v11, v14, v15")
        if c == 0:
            A(f"v_accvgpr_read_b32 v10, a{GA+20}"); A("v_lshl_or_b32 v10, v10, 16, v10")
            A(f"s_lshl_b32 s{sT0}, s{sW}, 9\ns_add_u32 s{sT0}, s{sT0}, {L_AUG}\nv_and_b32 v30, 31, v0\nv_lshlrev_b32 v30, 4, v30\nv_add_u32 v30, s{sT0}, v30")
        else: A("v_mov_b32 v10, 0")
        A(I(f"ds_write_b128 v30, v[10:13] offset:{2048*c}", 'AUGW'))
    A(f"v_accvgpr_read_b32 v14, a{GA+16}"); A(f"v_accvgpr_read_b32 v{vSTD}, a{GA+17}")
    A(f"v_rcp_f32 v15, v{vSTD}")
    A(f"v_mul_f32 v{vC0}, {fl(C0)}, v15"); A("v_mul_f32 v16, v15, v15"); A("v_mul_f32 v16, v16, v15"); A(f"v_mul_f32 v{vC1}, {fl(C1)}, v16")
    A(f"v_mul_f32 v16, {fl(LOG2E)}, v15"); A(f"v_cndmask_b32 v16, v16, v15, s[{sMHI}:{sMHI+1}]")
    A(f"s_lshl_b32 s{sT0}, s{sW}, 8\ns_add_u32 s{sT0}, s{sT0}, {L_STAT}\nv_lshlrev_b32 v31, 2, v0\nv_add_u32 v31, s{sT0}, v31")
    A(I("ds_write_b32 v31, v16", 'STATW'))
    A("v_mov_b32 v13, 0")
    A(f"v_cvt_pk_bf16_f32 v15, v{vSTD}, v13"); A("v_lshlrev_b32 v15, 16, v15"); A(f"v_sub_f32 v15, v{vSTD}, v15"); A(f"v_cvt_pk_bf16_f32 v10, v{vSTD}, v15")
    A("v_sub_f32 v14, 0, v14")
    A("v_cvt_pk_bf16_f32 v11, v14, v14"); A("v_lshlrev_b32 v15, 16, v11"); A("v_sub_f32 v15, v14, v15"); A("v_cvt_pk_bf16_f32 v12, v15, v13")
    for n in (10, 11, 12): A(f"v_cndmask_b32 v{n}, v{n}, v13, s[{sMHI}:{sMHI+1}]")
    return P
XAUG = vr(10)

TMP = [14, 15, 16, 17, 18, 19, 20, 9]
def gelu_quad(a0):
    t = TMP[:4]; r = [a0 + n for n in range(4)]
    base = a0 - (a0 - ACC) % 8; dst = base + ((a0 - base) // 2)
    S = []
    S += [f"v_mul_f32 v{t[n]}, v{r[n]}, v{r[n]}" for n in range(4)]
    S += [f"v_fma_f32 v{t[n]}, v{t[n]}, v{vC1}, v{vC0}" for n in range(4)]
    S += [f"v_mul_f32 v{t[n]}, v{r[n]}, v{t[n]}" for n in range(4)]
    S += [f"v_exp_f32 v{t[n]}, v{t[n]}" for n in range(4)]
    S += [f"v_fma_f32 v{t[n]}, v{t[n]}, v{vSTD}, v{vSTD}" for n in range(4)]
    S += [f"v_rcp_f32 v{t[n]}, v{t[n]}" for n in range(4)]
    S += [f"v_mul_f32 v{t[n]}, v{r[n]}, v{t[n]}" for n in range(4)]
    S += [f"v_cvt_pk_bf16_f32 v{dst}, v{t[0]}, v{t[1]}", f"v_cvt_pk_bf16_f32 v{dst+1}, v{t[2]}, v{t[3]}"]
    return S
def h_epilogue():
    S = []
    S.append(f"s_mul_i32 s{sG0}, s{sT32}, {112*1024}\ns_mul_i32 s{sG1}, s{sJ}, {6*1024}\ns_add_u32 s{sG0}, s{sG0}, {WS_H}\ns_add_u32 s{sG1}, s{sG1}, s{sG0}")
    for g in range(4):
        for t in range(2 if g < 3 else 1):
            a = ACC + 16 * g + 8 * t
            S += gelu_quad(a) + gelu_quad(a + 4)
            n = 2 * g + t
            if n == 4: S.append(f"s_add_u32 s{sG1}, s{sG1}, 4096")
            if n == 6: S.append(f"s_lshl_b32 s{sG1}, s{sJ}, 10\ns_add_u32 s{sG1}, s{sG1}, {96*1024}\ns_add_u32 s{sG1}, s{sG1}, s{sG0}")
            S.append(I(f"buffer_store_dwordx4 {vr(a)}, v{vL16}, {srd(sWS)}, s{sG1} offen offset:{1024*(n%4) if n < 6 else 0} sc1", 'HST'))
    return S
def phi_quad(a0, scale, dst, T=None):
    t = TMP[:4]; u = TMP[4:8]; r = [a0 + n for n in range(4)]
    S = []
    S += [f"v_mul_f32 v{t[n]}, v{r[n]}, v{scale[n]}" for n in range(4)]
    S += [f"v_min_f32 v{u[n]}, 0, v{t[n]}" for n in range(4)]
    S += [f"v_exp_f32 v{u[n]}, v{u[n]}" for n in range(4)]
    S += [f"v_max_f32 v{t[n]}, 0, v{t[n]}" for n in range(4)]
    S += [f"v_add_f32 v{u[n]}, {fl(1e-6)}, v{u[n]}" for n in range(4)]
    S += [f"v_fmac_f32 v{u[n]}, {fl(1/LOG2E)}, v{t[n]}" for n in range(4)]
    S += [f"v_cvt_pk_bf16_f32 v{dst}, v{u[0]}, v{u[1]}", f"v_cvt_pk_bf16_f32 v{dst+1}, v{u[2]}, v{u[3]}"]
    return S

ACCK = WB; WBUF = [WB + 16, WB + 20, WB + 24]; ACCV = ACC; ACCQ = ACC + 16
vAUGR = vT30
def w2_dma(u):
    c, h = divmod(u, 2)
    pre = f"s_add_u32 s{sT0}, s{sOW2+c}, {32768*h}\n"
    d = dma4(pre + f"s_add_u32 m0, s{sW4K}, {(u%4)*16*K}", vW2, sW2, f"s{sT0}", f'U{u}')
    if u >= 4: d[0] = [WaitTok(f'PK{u-4}')] + d[0]
    return d
def w2_park(u):
    out = []
    for ks in range(2):
        for cg in range(2):
            rd = tr_pair(16 * u + 8 * ks + 4 * cg, True, (u % 4) * 16 * K + ks * 2 * K, K, areg=vTRB[cg], tok=f'PK{u}')
            out.append(([WaitTok(f'U{u}')] if ks == 0 and cg == 0 else []) + rd)
    return out
def w2_stream(u0, u1):
    S = []
    for u in range(u0, u1):
        pk = w2_park(u)
        prev = w2_dma(u + 3) if (u >= 1 and u + 3 < 14) else []
        for n in range(4):
            S.append(pk[n])
            if prev: S.append(prev[n])
    return S

def group_main(g, acc, tokside, barriers):
    steps = [(b, t) for b in range(8) for t in range(4)]
    def rd(n):
        if n == 32: return [f"ds_read_b128 {vr(WBUF[n%3])}, v{vAUGR} offset:{GAUG[g]*512}"]
        b, t = steps[n]
        pre = []
        if t == 0 and b in barriers: pre = [WaitTok(*barriers[b]), "s_barrier"]
        return pre + tr_pair(WBUF[n % 3], False, unit_lds(UIDX[(g, b)]) + t * K, 256, tok=f'W{g}{b}')
    main = []
    for n in range(33):
        xop = xf(n) if n < 32 else XAUG
        wop = vr(WBUF[n % 3])
        m = mfma(vr(acc, 16), xop, wop, '0' if n == 0 else None) if tokside else mfma(vr(acc, 16), wop, xop, '0' if n == 0 else None)
        main.append((n, m))
    return rd, main

def stage_B():
    P = []
    rdk, mk = group_main('k', ACCK, True, {2: ['R1', 'WA7'], 6: ['R2', 'R3', 'Wk5']})
    rdv, mv = group_main('v', ACCV, True, {7: ['R4']})
    rdq, mq = group_main('q', ACCQ, False, {4: ['R5']})
    aug = [mfma(vr(ACC + 16 * g, 16), vr(WB + 4 * g), XAUG) for g in range(4)]
    P += [aug[0], rdk(0), aug[1], rdk(1), aug[2], aug[3]]
    seq = [(rdk, mk), (rdv, mv), (rdq, mq)]
    flat = []
    for gi, (rd, mm) in enumerate(seq):
        for n, m in mm: flat.append((gi, n, m))
    def atom(idx):
        gi, n, m = flat[idx]
        nxt = []
        if idx + 2 < len(flat):
            g2, n2, _ = flat[idx + 2]
            nxt = seq[g2][0](n2)
        return [m, nxt]
    mainK = [atom(i) for i in range(0, 33)]; mainV = [atom(i) for i in range(33, 66)]; mainQ = [atom(i) for i in range(66, 99)]
    he = h_epilogue()
    cut = [n for n, x in enumerate(he) if isinstance(x, I) and x.kind == 'vst'][3] + 1
    dK1 = w2_dma(0) + w2_dma(1)
    dK2 = w2_dma(2) + w2_dma(3) + w2_stream(0, 2)
    dK3 = round_dma(5) + w2_stream(2, 3)
    P += interleave(mainK, (he[:cut], 0.0, 1.0), (dK1, 0.0, 6 / 33), (dK2, 7 / 33, 22 / 33), (dK3, 23 / 33, 1.0))
    P += stamp(6)
    P += interleave(mainV, (he[cut:], 0.0, 1.0), (w2_stream(3, 8), 0.0, 1.0))
    P += stamp(7)
    RL = ACC + 32; RS = ACC + 48
    E = []
    E.append(f"s_lshl_b32 s{sT2}, s{sW}, 8\ns_add_u32 s{sT2}, s{sT2}, {L_STAT}\nv_lshrrev_b32 v{vT31}, 5, v0\nv_lshlrev_b32 v{vT31}, 4, v{vT31}\nv_add_u32 v{vT31}, s{sT2}, v{vT31}")
    E.append([WaitTok('STATW')] + [f"ds_read_b128 {vr(RL+4*j)}, v{vT31} offset:{32*j}" for j in range(4)])
    E.append([f"ds_read_b128 {vr(RS+4*j)}, v{vT31} offset:{128+32*j}" for j in range(4)])
    for q in range(4): E += phi_quad(ACCK + 4 * q, [RL + 4 * q + n for n in range(4)], ACCK + 8 * (q // 2) + 2 * (q % 2))
    for q in range(4):
        E += [f"v_mul_f32 v{TMP[n]}, v{ACCV+4*q+n}, v{RS+4*q+n}" for n in range(4)]
        d = ACCV + 8 * (q // 2) + 2 * (q % 2)
        E += [f"v_cvt_pk_bf16_f32 v{d}, v{TMP[0]}, v{TMP[1]}", f"v_cvt_pk_bf16_f32 v{d+1}, v{TMP[2]}, v{TMP[3]}"]
    KV = RL; ZZ = RS
    E.append([mfma(vr(KV, 16), vr(ACCK), vr(ACCV), '0'), mfma(vr(ZZ, 16), ar(228), vr(ACCK), '0')])
    E.append([mfma(vr(KV, 16), vr(ACCK + 8), vr(ACCV + 8)), mfma(vr(ZZ, 16), ar(228), vr(ACCK + 8))])
    ones = [f"v_mov_b32 v{vT31-0}, 0x3f803f80"] + [f"v_accvgpr_write_b32 a{228+n}, v{vT31}" for n in range(4)]
    hflag = flag_store(['HST'], f"s_lshl_b32 s{sT2}, s{sT32}, 4\ns_add_u32 s{sT2}, s{sT2}, s{sJ}\ns_lshl_b32 s{sT2}, s{sT2}, 7\ns_add_u32 s{sT2}, s{sT2}, {WS_FH}", sT2, WB + 28)
    P += interleave(mainQ, ([ones] + E, 0.0, 0.85), (w2_stream(8, 11), 0.0, 1.0), ([hflag], 0.7, 0.75))
    P += stamp(8)
    X = []
    X += [f"v_cndmask_b32 v{KV+r}, v{KV+r}, v{KV+8+r}, s[{sM16}:{sM16+1}]" for r in range(8)]
    X.append(f"s_mul_i32 s{sT2}, s{sW}, 2304\ns_add_u32 s{sT2}, s{sT2}, {L_SCR}\nv_add_u32 v{vT31}, s{sT2}, v{vL16}\nv_lshlrev_b32 v{vT30}, 2, v0\nv_add_u32 v{vT30}, s{sT2}, v{vT30}")
    X += [I(f"ds_write_b128 v{vT31}, {vr(KV)}", 'SC1'), I(f"ds_write_b128 v{vT31}, {vr(KV+4)} offset:1024", 'SC1'), I(f"ds_write_b32 v{vT30}, v{ZZ} offset:2048", 'SC1')]
    X += [WaitTok('SC1', 'Wq7'), "s_barrier"]
    P += X
    R = []
    R.append(f"s_min_u32 s{sT2}, s{sW}, 2\ns_lshl_b32 s{sT2}, s{sT2}, 10\ns_add_u32 s{sT2}, s{sT2}, {L_SCR}\nv_add_u32 v{vT31}, s{sT2}, v{vL16}")
    R += [f"ds_read_b128 {vr(KV+4*w)}, v{vT31} offset:{2304*w}" for w in range(4)]
    R.append(f"s_lshl_b32 s{sT2}, s{sJ}, 4\ns_add_u32 s{sT2}, s{sT2}, s{sI}\ns_lshl_b32 s{sT2}, s{sT2}, 12\ns_lshl_b32 s{sT0}, s{sW}, 10\ns_add_u32 s{sT2}, s{sT2}, s{sT0}\ns_add_u32 s{sT2}, s{sT2}, {WS_KVP}")
    R += [f"v_add_f32 v{KV+n}, v{KV+n}, v{KV+4+n}" for n in range(4)] + [f"v_add_f32 v{KV+8+n}, v{KV+8+n}, v{KV+12+n}" for n in range(4)]
    R += [f"v_add_f32 v{KV+n}, v{KV+n}, v{KV+8+n}" for n in range(4)]
    R.append(I(f"buffer_store_dwordx4 {vr(KV)}, v{vL16}, {srd(sWS)}, s{sT2} offen sc1", 'KVST'))
    P += R
    P += stamp(9)
    Q = []
    Q.append(f"v_rcp_f32 v{vC0}, v{vSTD}\nv_mul_f32 v{vC0}, {fl(LOG2E)}, v{vC0}")
    for q in range(4): Q += phi_quad(ACCQ + 4 * q, [vC0] * 4, PQ + 2 * q)
    wo = []
    wo.append(hpoll_issue())
    for n in range(4):
        wo += dma4(f"s_lshl_b32 s{sT0}, s{sW}, 15\ns_add_u32 s{sT0}, s{sT0}, {n*131072}\ns_add_u32 m0, s{sW4K}, {L_WO+n*16*K}", vW2, sWO, f"s{sT0}", 'WO')
    P += interleave(Q, (wo, 0.0, 1.0), (w2_stream(11, 14), 0.0, 1.0))
    P += stamp(10)
    return P
PQ = XF + 120
vH = [5, 6]; vPOLL = 7; vZ = 8
HB = [f"a[{224+4*n}:{227+4*n}]" for n in range(8)] + [vr(WB + 4 * n) for n in range(8)]
PH = XF + 116
def hpoll_text(): return [f"buffer_load_dwordx2 {vr(PH,2)}, v{vPOLL}, {srd(sWS)}, s{sG0} offen sc1"]
def hpoll_issue():
    return [f"s_lshl_b32 s{sG0}, s{sRT}, 12\ns_add_u32 s{sG0}, s{sG0}, {WS_FH}\nv_and_b32 v{vPOLL}, 31, v0\nv_lshlrev_b32 v{vPOLL}, 7, v{vPOLL}"] + hpoll_text()

def stage_C():
    P = []
    P.append(f"s_lshr_b32 s{sT0}, s{sW}, 1\ns_mul_i32 s{sT0}, s{sT0}, {112*1024}\nv_add_u32 v{vH[0]}, s{sT0}, v{vL16}\ns_sub_u32 s{sT0}, {112*1024}, s{sT0}\nv_add_u32 v{vH[1]}, s{sT0}, v{vL16}")
    P += poll_check(hpoll_text(), [PH], 'h')
    P += stamp(11)
    def hld(n, t): return I(f"buffer_load_dwordx4 {HB[(2*n+t)%16]}, v{vH[t]}, {srd(sWS)}, s{sOH+n//4} offen offset:{1024*(n%4)} sc1")
    D = 7
    for n in range(D): P += [hld(n, 0), hld(n, 1)]
    steps = []
    for n in range(28):
        at = []
        for t in range(2):
            for cg in range(2):
                u = cg + 2 * t
                m = mfma(vr(ACC + 16 * u, 16), ar(8 * n + 4 * cg), HB[(2 * n + t) % 16], '0' if n == 0 else None)
                at.append([m])
        if n + D < 28:
            at[0].insert(0, hld(n + D, 0)); at[2].insert(0, hld(n + D, 1))
        steps.append(at)
    fl_ = lambda a, b: [x for s in steps[a:b] for x in s]
    T = XF
    kvflag = flag_store(['KVST'], f"s_lshl_b32 s{sT2}, s{sJ}, 4\ns_add_u32 s{sT2}, s{sT2}, s{sI}\ns_lshl_b32 s{sT2}, s{sT2}, 2\ns_add_u32 s{sT2}, s{sT2}, s{sW}\ns_lshl_b32 s{sT2}, s{sT2}, 7\ns_add_u32 s{sT2}, s{sT2}, {WS_FKV}", sT2, T + 60)
    kvpoll_t = [f"buffer_load_dwordx2 {vr(PH,2)}, v{vPOLL}, {srd(sWS)}, s{sG0} offen sc1"]
    kvpoll = [f"s_lshl_b32 s{sG0}, s{sJ}, 13\ns_lshl_b32 s{sT2}, s{sW}, 11\ns_add_u32 s{sG0}, s{sG0}, s{sT2}\ns_add_u32 s{sG0}, s{sG0}, {WS_FKV}\nv_and_b32 v{vPOLL}, 15, v0\nv_lshlrev_b32 v{vPOLL}, 7, v{vPOLL}"] + kvpoll_t
    gl = [f"s_lshl_b32 s{sG1}, s{sJ}, 16\ns_lshl_b32 s{sT2}, s{sW}, 14\ns_add_u32 s{sG1}, s{sG1}, s{sT2}\ns_add_u32 s{sG1}, s{sG1}, {WS_KVP}\n"
          f"v_and_b32 v{vZ}, 31, v0\nv_lshlrev_b32 v{vZ}, 2, v{vZ}\nv_lshrrev_b32 v{vT31}, 5, v0\nv_lshl_or_b32 v{vZ}, v{vT31}, 12, v{vZ}"]
    for p in range(4):
        pre = [f"s_add_u32 s{sG1}, s{sG1}, 4096"] if p else []
        gl.append(pre + [f"buffer_load_dwordx4 {vr(T+8*p)}, v{vL16}, {srd(sWS)}, s{sG1} offen sc1"])
        gl.append([f"buffer_load_dwordx4 {vr(T+8*p+4)}, v{vL16}, {srd(sWS)}, s{sG1} offen offset:1024 sc1"])
        if p % 2 == 0: gl.append([f"buffer_load_dword v{T+32+p//2}, v{vZ}, {srd(sWS)}, s{sG1} offen offset:2048 sc1"])
    g1 = []
    g1 += [f"v_add_f32 v{T+n}, v{T+n}, v{T+8+n}" for n in range(8)] + [f"v_add_f32 v{T+16+n}, v{T+16+n}, v{T+24+n}" for n in range(8)]
    g1 += [f"v_add_f32 v{T+n}, v{T+n}, v{T+16+n}" for n in range(8)]
    g1 += [f"v_add_f32 v{T+32}, v{T+32}, v{T+33}", f"v_mov_b32 v{T+33}, v{T+32}", f"v_permlane32_swap_b32 v{T+32}, v{T+33}", f"v_add_f32 v{T+32}, v{T+32}, v{T+33}"]
    g1.append(f"s_mul_i32 s{sT2}, s{sW}, 2304\ns_add_u32 s{sT2}, s{sT2}, {L_SCR2}\nv_add_u32 v{vT31}, s{sT2}, v{vL16}\nv_lshlrev_b32 v{vT30}, 2, v0\nv_add_u32 v{vT30}, s{sT2}, v{vT30}")
    g1 += [I(f"ds_write_b128 v{vT31}, {vr(T)}", 'SC2'), I(f"ds_write_b128 v{vT31}, {vr(T+4)} offset:1024", 'SC2'), I(f"ds_write_b32 v{vT30}, v{T+32} offset:2048", 'SC2')]
    bar1 = [[WaitTok('SC2', 'WO', 'PK13'), "s_barrier"]]
    g2 = []
    g2.append(f"v_add_u32 v{vT31}, {L_SCR2}, v{vL16}\nv_lshrrev_b32 v{vT30}, 5, v0\nv_lshlrev_b32 v{vT30}, 4, v{vT30}\nv_add_u32 v{vT30}, {L_SCR2+2048}, v{vT30}")
    for w in range(4):
        g2 += [f"ds_read_b128 {vr(T+8*w)}, v{vT31} offset:{2304*w}", f"ds_read_b128 {vr(T+8*w+4)}, v{vT31} offset:{2304*w+1024}"]
    Z = T + 32
    for w in range(4):
        g2 += [f"ds_read_b128 {vr(Z+16*w+4*j)}, v{vT30} offset:{2304*w+32*j}" for j in range(4)]
    g2 += [f"v_add_f32 v{T+n}, v{T+n}, v{T+8+n}" for n in range(8)] + [f"v_add_f32 v{T+16+n}, v{T+16+n}, v{T+24+n}" for n in range(8)]
    g2 += [f"v_add_f32 v{T+n}, v{T+n}, v{T+16+n}" for n in range(8)]
    g2 += [f"v_add_f32 v{Z+n}, v{Z+n}, v{Z+16+n}" for n in range(16)] + [f"v_add_f32 v{Z+32+n}, v{Z+32+n}, v{Z+48+n}" for n in range(16)]
    g2 += [f"v_add_f32 v{Z+n}, v{Z+n}, v{Z+32+n}" for n in range(16)]
    g2 += [f"v_cndmask_b32 v{T+8+n}, v{T+n}, v{Z+n}, s[{sM16}:{sM16+1}]" for n in range(8)]
    g2 += [f"v_cndmask_b32 v{T+16+n}, v{Z+8+n}, v{T+n}, s[{sM16}:{sM16+1}]" for n in range(8)]
    g2 += [f"v_cvt_pk_bf16_f32 v{T+24+n}, v{T+8+2*n}, v{T+9+2*n}" for n in range(8)]
    D0 = Z + 16; D1 = Z + 32
    g2 += [[mfma(vr(D0, 16), vr(T + 24), vr(PQ), '0'), mfma(vr(D1, 16), vr(T + 28), vr(PQ + 4), '0')]]
    g3 = []
    g3.append(f"s_lshl_b32 s{sG1}, s{sT32}, 15\ns_lshl_b32 s{sT2}, s{sJ}, 11\ns_add_u32 s{sG1}, s{sG1}, s{sT2}\ns_add_u32 s{sG1}, s{sG1}, {WS_O}")
    g3 += [f"v_add_f32 v{T}, {fl(1e-6)}, v{D0+8}", f"v_add_f32 v{T+1}, {fl(1e-6)}, v{D1}", f"v_rcp_f32 v{T}, v{T}", f"v_rcp_f32 v{T+1}, v{T+1}"]
    for hd, num in ((0, D0), (1, D1 + 8)):
        g3 += [f"v_mul_f32 v{num+n}, v{num+n}, v{T+hd}" for n in range(8)]
        g3 += [f"v_cvt_pk_bf16_f32 v{T+4+4*hd+n}, v{num+2*n}, v{num+2*n+1}" for n in range(4)]
        g3.append(I(f"buffer_store_dwordx4 {vr(T+4+4*hd)}, v{vL16}, {srd(sWS)}, s{sG1} offen offset:{1024*hd} sc1", 'OST'))
    oflag = flag_store(['OST'], f"s_lshl_b32 s{sT2}, s{sT32}, 4\ns_add_u32 s{sT2}, s{sT2}, s{sJ}\ns_lshl_b32 s{sT2}, s{sT2}, 7\ns_add_u32 s{sT2}, s{sT2}, {WS_FO}", sT2, WB - 2)
    vO = vZ
    wosetup = [f"s_and_b32 s{sT0}, s{sW}, 1\ns_lshl_b32 s{sT0}, s{sT0}, 9\ns_sub_u32 s{sT0}, s{sT0}, s{sW4K}\ns_add_u32 s{sT0}, s{sT0}, {L_WO}\nv_and_b32 v{vO}, 0xfffffdff, v{vTRB[0]}\nv_add_u32 v{vO}, s{sT0}, v{vO}"]
    wop = [tr_pair(XF + 4 * ks, False, ks * 2 * K, K, areg=vO, tok='WOP') for ks in range(32)]
    opoll_t = [f"buffer_load_dwordx2 {vr(vT30,2)}, v{vPOLL}, {srd(sWS)}, s{sG0} offen sc1"]
    opoll = [f"s_lshl_b32 s{sG0}, s{sRT}, 1\ns_lshr_b32 s{sT2}, s{sW}, 1\ns_add_u32 s{sG0}, s{sG0}, s{sT2}\ns_lshl_b32 s{sG1}, s{sG0}, 15\ns_lshl_b32 s{sG0}, s{sG0}, 11\ns_add_u32 s{sG0}, s{sG0}, {WS_FO}\n"
             f"s_and_b32 s{sT2}, s{sW}, 1\ns_lshl_b32 s{sT2}, s{sT2}, 12\ns_add_u32 s{sG1}, s{sG1}, s{sT2}\ns_add_u32 s{sG1}, s{sG1}, {WS_O}"] + opoll_t
    odma = []
    for n in range(4):
        odma += dma4((f"s_add_u32 s{sG1}, s{sG1}, 8192\n" if n else "") + f"s_add_u32 m0, s{sW4K}, {L_O+n*16*K}", vL16, sWS, f"s{sG1}", f'O{n}', extra='sc1 ')
    vXO = vPOLL
    xt = [f"s_lshl_b32 s{sT0}, s{sRT}, 6\ns_lshr_b32 s{sT2}, s{sW}, 1\ns_lshl_b32 s{sT2}, s{sT2}, 5\ns_add_u32 s{sT0}, s{sT0}, s{sT2}\ns_lshl_b32 s{sT0}, s{sT0}, 10\n"
          f"s_lshl_b32 s{sT2}, s{sCT}, 1\ns_and_b32 s{sT3}, s{sW}, 1\ns_add_u32 s{sT2}, s{sT2}, s{sT3}\ns_lshl_b32 s{sT2}, s{sT2}, 6\ns_add_u32 s{sT1}, s{sT0}, s{sT2}\n"
          f"v_lshrrev_b32 v{vH[0]}, 2, v0\nv_lshlrev_b32 v{vH[0]}, 10, v{vH[0]}\nv_and_b32 v{vH[1]}, 3, v0\nv_lshl_or_b32 v{vH[0]}, v{vH[1]}, 4, v{vH[0]}\nv_add_u32 v{vH[1]}, {16*1024-1024}, v{vH[0]}\n"
          f"s_lshr_b32 s{sT0}, s{sW4K}, 1\ns_add_u32 m0, s{sT0}, {L_XT}",
          I(f"buffer_load_dwordx4 v{vH[0]}, {srd(sX)}, s{sT1} offen lds", 'XT'), I(f"buffer_load_dwordx4 v{vH[1]}, {srd(sX)}, s{sT1} offen offset:1024 lds", 'XT'),
          f"v_and_b32 v14, 31, v0\nv_lshlrev_b32 v14, 1, v14\nbuffer_load_ushort v10, v14, {srd(sB2)}, s{sT2} offen"]
    c = cfg
    P += interleave(fl_(0, 4), ([kvflag], 0.5, 0.6))
    P += interleave(fl_(4, 8), ([kvpoll], 0.5, 0.6))
    P += poll_check(kvpoll_t, [PH], 'kv')
    P += stamp(12)
    P += interleave(fl_(8, 11), (gl, 0.0, 0.7))
    P += interleave(fl_(11, 13), (g1, 0.0, 1.0))
    P += bar1
    P += interleave(fl_(13, 15), (g2, 0.0, 1.0))
    P += interleave(fl_(15, 16), (g3, 0.3, 1.0))
    P += stamp(13)
    P += interleave(fl_(16, 21), (wosetup + wop[:16], 0.1, 1.0))
    P += interleave(fl_(21, 25), ([oflag], 0.0, 0.1), (wop[16:], 0.0, 1.0), ([xt], 0.2, 0.3), ([opoll], 0.9, 1.0))
    P += [WaitTok('WOP'), "s_barrier"]
    P += interleave(fl_(25, 27))
    P += poll_check(opoll_t, [vT30], 'o')
    P += stamp(14)
    P += interleave(fl_(27, 28), (odma[:4], 0.0, 1.0))
    P += stamp(15)
    cfg._odma = odma
    return P

def stage_D():
    P = []
    odma = cfg._odma
    W = []
    for u in (1, 2, 3):
        W.append(f"s_xor_b32 s{sT0}, s{sW}, {u}\ns_mul_i32 s{sT0}, s{sT0}, {12*K}\ns_add_u32 s{sT0}, s{sT0}, {L_GS+(u-1)*4*K}\nv_add_u32 v{vT31}, s{sT0}, v{vL16}")
        W += [I(f"ds_write_b128 v{vT31}, {vr(ACC+16*u+4*j)} offset:{1024*j}", 'GS') for j in range(4)]
    P += interleave(W, (odma[4:], 0.0, 1.0))
    P += [WaitTok('GS', 'O0'), "s_barrier"]
    P += stamp(16)
    S = ACC + 16
    OB = [WB + 4 * n for n in range(4)]
    vO = vZ
    P.append(f"s_lshr_b32 s{sT0}, s{sW}, 1\ns_lshl_b32 s{sT0}, s{sT0}, 13\nv_add_u32 v{vO}, s{sT0}, v{vL16}\ns_mul_i32 s{sT0}, s{sW}, {12*K}\ns_add_u32 s{sT0}, s{sT0}, {L_GS}\nv_add_u32 v{vT31}, s{sT0}, v{vL16}")
    def ord_(ks):
        n, r = divmod(ks, 8)
        pre = [WaitTok(f'O{n}'), "s_barrier"] if (r == 0 and n > 0) else []
        return pre + [f"ds_read_b128 {vr(OB[ks%4])}, v{vO} offset:{L_O+n*16*K+(r//4)*4*K+(r%4)*K}"]
    main = []
    P += [ord_(0), ord_(1), ord_(2)]
    for ks in range(32):
        main.append([mfma(vr(S, 16), xf(ks), vr(OB[ks % 4]), '0' if ks == 0 else None), ord_(ks + 3) if ks + 3 < 32 else []])
    G = ACC; R0 = ACC + 32; R1 = WB + 16
    E = []
    for u in range(3):
        dst = (R0, R0 + 16, R1)[u]
        E += [f"ds_read_b128 {vr(dst+4*j)}, v{vT31} offset:{u*4*K+1024*j}" for j in range(4)]
    E += ["v_mov_b32 v11, 0\nv_mov_b32 v12, 0\nv_mov_b32 v13, 0\nv_mov_b32 v15, 0\nv_mov_b32 v16, 0\nv_mov_b32 v17, 0",
          f"v_mov_b32 v14, 0x3f80\nv_cndmask_b32 v14, v14, v11, s[{sMHI}:{sMHI+1}]"]
    E += [f"v_add_f32 v{G+n}, v{G+n}, v{R0+n}" for n in range(16)] + [f"v_add_f32 v{R1+n}, v{R1+n}, v{R0+16+n}" for n in range(16)]
    E += [f"v_add_f32 v{G+n}, v{G+n}, v{R1+n}" for n in range(16)]
    E.append(mfma(vr(G, 16), vr(10), vr(14)))
    XR = R0 + 16
    E.append(f"s_lshr_b32 s{sT0}, s{sW4K}, 1\ns_add_u32 s{sT0}, s{sT0}, {L_XT}\nv_and_b32 v{vT30}, 31, v0\nv_lshlrev_b32 v{vT30}, 6, v{vT30}\nv_lshrrev_b32 v{vT31}, 5, v0\nv_lshl_or_b32 v{vT30}, v{vT31}, 3, v{vT30}\nv_add_u32 v{vT30}, s{sT0}, v{vT30}\nv_add_u32 v{vT31}, s{sT0}, v{vL16}")
    E.append([WaitTok('XT')] + [f"ds_read_b64 {vr(R1+2*j,2)}, v{vT30} offset:{16*j}" for j in range(4)])
    for q in range(4):
        r = [G + 4 * q + n for n in range(4)]; t = [R0 + n for n in range(4)]
        E += [f"v_mul_f32 v{t[n]}, {fl(-LOG2E)}, v{r[n]}" for n in range(4)]
        E += [f"v_exp_f32 v{t[n]}, v{t[n]}" for n in range(4)]
        E += [f"v_add_f32 v{t[n]}, 1.0, v{t[n]}" for n in range(4)]
        E += [f"v_rcp_f32 v{t[n]}, v{t[n]}" for n in range(4)]
        E += [f"v_mul_f32 v{r[n]}, v{r[n]}, v{t[n]}" for n in range(4)]
    for n in range(8):
        E += [f"v_lshlrev_b32 v{XR+2*n}, 16, v{R1+n}", f"v_and_b32 v{XR+2*n+1}, 0xffff0000, v{R1+n}"]
    P += interleave(main, (E, 0.0, 0.8))
    P += stamp(17)
    F = []
    F += [f"v_fmac_f32 v{XR+n}, v{S+n}, v{G+n}" for n in range(16)]
    F += [f"v_cvt_pk_bf16_f32 v{R1+n}, v{XR+2*n}, v{XR+2*n+1}" for n in range(8)]
    F += [I(f"ds_write_b64 v{vT30}, {vr(R1+2*j,2)} offset:{16*j}", 'OUTW') for j in range(4)]
    F += [WaitTok('OUTW'), f"ds_read_b128 {vr(G)}, v{vT31}", f"ds_read_b128 {vr(G+4)}, v{vT31} offset:1024"]
    F += [f"v_add_u32 v{vH[1]}, 1024, v{vH[1]}"]
    F += [f"buffer_store_dwordx4 {vr(G)}, v{vH[0]}, {srd(sOUT)}, s{sT1} offen", f"buffer_store_dwordx4 {vr(G+4)}, v{vH[1]}, {srd(sOUT)}, s{sT1} offen"]
    P += F
    P += stamp(18)
    P += [f"s_or_b32 s{sT0}, s2, s{sW}", f"s_cmp_lg_u32 s{sT0}, 0", "s_cbranch_scc1 L_end",
          f"v_mov_b32 v30, s{sTAG}", f"v_mov_b32 v31, s{sTAG+1}", "s_mov_b64 exec, 1",
          f"buffer_store_dwordx2 v[30:31], off, {srd(sWS)}, 0 sc1"]
    return P

HEADER = """; Fused persistent kernel: LayerNorm -> [QKV | FFN1] -> linear attention state -> [FFN2 | out-proj] -> x + s*silu(g)
; @launch grid=(256,1,1) block=(256,1,1) lds=163840
.amdgcn_target "amdgcn-amd-amdhsa--gfx950"
.text
.globl {n}
.p2align 8
.type {n},@function
{n}:
"""
FOOTER = """L_end:
s_endpgm
.section .rodata,"a"
.p2align 6
.amdhsa_kernel {n}
  .amdhsa_next_free_vgpr 512
  .amdhsa_next_free_sgpr 102
  .amdhsa_accum_offset 256
  .amdhsa_group_segment_fixed_size 0
  .amdhsa_kernarg_size 88
  .amdhsa_user_sgpr_count 2
  .amdhsa_user_sgpr_kernarg_segment_ptr 1
  .amdhsa_system_sgpr_workgroup_id_x 1
.end_amdhsa_kernel
"""
def generate():
    slow.clear(); _lab[0] = 0
    prog = build()
    F = Finalizer()
    out = F.run(prog)
    txt = HEADER.format(n=NAME) + "\n".join(("" if i.kind == 'label' else "    ") + i.text for i in out)
    txt += "\n    s_endpgm\n" + "\n".join(slow) + "\n" + FOOTER.format(n=NAME)
    return txt, F
if __name__ == "__main__":
    import argparse
    ap = argparse.ArgumentParser()
    ap.add_argument('-o', default='recurrent_scan__linear_attn_block__dense_activation_gelu__prompt.s')
    ap.add_argument('--set', action='append', default=[])
    a = ap.parse_args()
    for kv in a.set:
        k, v = kv.split('='); setattr(cfg, k, eval(v))
    txt, F = generate()
    open(a.o, 'w').write(txt)
    print(F.stats, 'max vm', F.maxvm)
```

```python
import sys
def header(lds, grid=256, block=256):
    return f"""; @launch grid=({grid},1,1) block=({block},1,1) lds={lds}
.amdgcn_target "amdgcn-amd-amdhsa--gfx950"
.text
.globl mb_kernel
.p2align 8
.type mb_kernel,@function
mb_kernel:
"""
def footer(vgpr=256, acc=256, sgpr=96):
    return f"""
s_endpgm
.section .rodata,"a"
.p2align 6
.amdhsa_kernel mb_kernel
  .amdhsa_next_free_vgpr {vgpr}
  .amdhsa_next_free_sgpr {sgpr}
  .amdhsa_accum_offset {acc}
  .amdhsa_group_segment_fixed_size 0
  .amdhsa_kernarg_size 24
  .amdhsa_user_sgpr_count 2
  .amdhsa_user_sgpr_kernarg_segment_ptr 1
  .amdhsa_system_sgpr_workgroup_id_x 1
.end_amdhsa_kernel
"""
def gen(mode, pattern, nloads, inflight, share, nwaves=4, reps=1):
    L = []
    A = L.append
    A("s_cmp_ge_u32 s2, 256\ns_cbranch_scc1 L_end")
    A("s_load_dwordx4 s[4:7], s[0:1], 0")
    A("v_lshrrev_b32 v1, 6, v0")
    A("v_and_b32 v2, 63, v0")
    A("s_nop 0\nv_readfirstlane_b32 s20, v1")
    A("s_waitcnt lgkmcnt(0)")
    A("s_mov_b32 s8, s4\ns_mov_b32 s9, s5\ns_mov_b32 s10, 0x10000000\ns_mov_b32 s11, 0x20000")
    A("s_mov_b32 s12, s6\ns_mov_b32 s13, s7\ns_mov_b32 s14, 0x100000\ns_mov_b32 s15, 0x20000")
    per_wg = nloads * 1024 * nwaves
    if share == 'xcd':
        A("s_and_b32 s21, s2, 7")
    elif share == 'all':
        A("s_mov_b32 s21, 0")
    elif share == 'none':
        A("s_mov_b32 s21, s2")
    elif share == 'x8':
        A("s_and_b32 s21, s2, 7\ns_lshl_b32 s21, s21, 2\ns_lshr_b32 s22, s2, 3\ns_and_b32 s22, s22, 3\ns_add_u32 s21, s21, s22")
    A(f"s_mul_i32 s21, s21, {per_wg}")
    if pattern == 'lin':
        A("v_lshlrev_b32 v3, 4, v2")
        A(f"s_mul_i32 s22, s20, {nloads*1024}")
        step = lambda i: i * 1024
    elif pattern == 'frag':
        A("v_and_b32 v4, 31, v2\nv_lshrrev_b32 v5, 5, v2\nv_lshlrev_b32 v4, 10, v4\nv_lshlrev_b32 v5, 4, v5\nv_add_u32 v3, v4, v5")
        A(f"s_mul_i32 s22, s20, {32*1024}")
        step = lambda i: (i % 32) * 32 + (i // 32) * nwaves * 32 * 1024
    elif pattern == 'seg64':
        A("v_lshrrev_b32 v4, 2, v2\nv_and_b32 v5, 3, v2\nv_lshlrev_b32 v4, 10, v4\nv_lshlrev_b32 v5, 4, v5\nv_add_u32 v3, v4, v5")
        A(f"s_mul_i32 s22, s20, {16*1024}")
        step = lambda i: (i % 16) * 64 + (i // 16) * nwaves * 16 * 1024
    elif pattern == 'seg128':
        A("v_lshrrev_b32 v4, 3, v2\nv_and_b32 v5, 7, v2\nv_lshlrev_b32 v4, 10, v4\nv_lshlrev_b32 v5, 4, v5\nv_add_u32 v3, v4, v5")
        A(f"s_mul_i32 s22, s20, {8*1024}")
        step = lambda i: (i % 8) * 128 + (i // 8) * nwaves * 8 * 1024
    elif pattern == 'seg64x2':
        A("v_and_b32 v4, 31, v2\nv_lshrrev_b32 v4, 2, v4\nv_and_b32 v5, 3, v2\nv_lshlrev_b32 v4, 10, v4\nv_lshlrev_b32 v5, 4, v5\nv_add_u32 v3, v4, v5\nv_lshrrev_b32 v5, 5, v2\nv_lshlrev_b32 v5, 6, v5\nv_add_u32 v3, v3, v5")
        A(f"s_mul_i32 s22, s20, {8*1024}")
        step = lambda i: (i % 8) * 128 + (i // 8) * nwaves * 8 * 1024
    elif pattern == 'seg32':
        A("v_lshrrev_b32 v4, 1, v2\nv_and_b32 v5, 1, v2\nv_lshlrev_b32 v4, 10, v4\nv_lshlrev_b32 v5, 4, v5\nv_add_u32 v3, v4, v5")
        A(f"s_mul_i32 s22, s20, {32*1024}")
        step = lambda i: (i % 32) * 32 + (i // 32) * nwaves * 32 * 1024
    A("s_add_u32 s21, s21, s22")
    A(f"s_lshl_b32 s23, s20, 14")
    A("s_barrier")
    for rep in range(reps):
        A(f"s_memtime s[{30+rep*4}:{31+rep*4}]\ns_waitcnt lgkmcnt(0)")
        for i in range(nloads):
            A(f"s_add_u32 s24, s21, {step(i)}")
            if mode == 'reg':
                r = 16 + (i % inflight) * 4
                if i >= inflight: A(f"s_waitcnt vmcnt({inflight-1})")
                A(f"buffer_load_dwordx4 v[{r}:{r+3}], v3, s[8:11], s24 offen")
            else:
                if i >= inflight: A(f"s_waitcnt vmcnt({inflight-1})")
                A(f"s_add_u32 m0, s23, {(i % 16) * 1024}")
                A("s_nop 0")
                A(f"buffer_load_dwordx4 v3, s[8:11], s24 offen lds")
        A("s_waitcnt vmcnt(0)")
        A(f"s_memtime s[{32+rep*4}:{33+rep*4}]\ns_waitcnt lgkmcnt(0)")
        A("s_barrier")
    A(f"s_mul_i32 s25, s2, {nwaves}\ns_add_u32 s25, s25, s20\ns_lshl_b32 s25, s25, 5")
    A("v_mov_b32 v8, s25")
    for rep in range(reps):
        A(f"s_sub_u32 s26, s{32+rep*4}, s{30+rep*4}\nv_mov_b32 v9, s26")
        A(f"buffer_store_dword v9, v8, s[12:15], 0 offen offset:{rep*4}")
    A("s_waitcnt vmcnt(0)")
    A("L_end:")
    return header(65536*(2 if nwaves==8 else 1), 256, 64*nwaves) + "\n".join(L) + footer(vgpr=256 if nwaves==4 else 256)
if __name__ == "__main__":
    import itertools
    names = []
    for mode in ['reg', 'lds']:
        for pattern in ['lin', 'frag', 'seg32', 'seg64', 'seg64x2', 'seg128']:
            for share in ['xcd']:
                n = f"bw_{mode}_{pattern}_{share}"
                open(n + ".s", "w").write(gen(mode, pattern, 64, 16, share, 4, 2))
                names.append(n)
    for mode in ['reg', 'lds']:
        for share in ['none', 'all', 'x8']:
            n = f"bw_{mode}_lin_{share}"
            open(n + ".s", "w").write(gen(mode, 'lin', 64, 16, share, 4, 2)); names.append(n)
        for infl in [4, 8, 32]:
            n = f"bw_{mode}_lin_xcd_if{infl}"
            open(n + ".s", "w").write(gen(mode, 'lin', 64, infl, 'xcd', 4, 2)); names.append(n)
    print(" ".join(names))
```

```python
from gen_bw import header, footer
def gen(ndma, op, other=False, reg=False):
    L = []; A = L.append
    A("s_cmp_ge_u32 s2, 256\ns_cbranch_scc1 L_end")
    A("s_load_dwordx4 s[4:7], s[0:1], 0")
    A("v_lshrrev_b32 v1, 6, v0\nv_and_b32 v0, 63, v0\ns_nop 0\nv_readfirstlane_b32 s20, v1")
    A("s_waitcnt lgkmcnt(0)")
    A("s_mov_b32 s8, s4\ns_mov_b32 s9, s5\ns_mov_b32 s10, 0x10000000\ns_mov_b32 s11, 0x20000")
    A("s_mov_b32 s12, s6\ns_mov_b32 s13, s7\ns_mov_b32 s14, 0x100000\ns_mov_b32 s15, 0x20000")
    A("v_lshlrev_b32 v3, 4, v0\nv_lshlrev_b32 v4, 2, v0\nv_add_u32 v4, 0x8000, v4\ns_lshl_b32 s21, s2, 16\ns_lshl_b32 s22, s20, 14\ns_add_u32 s21, s21, s22\ns_lshl_b32 s23, s20, 12\ns_mov_b32 m0, s23\ns_barrier")
    if other: A("s_cmp_eq_u32 s20, 0\ns_cbranch_scc1 L_skip")
    for i in range(ndma): A(f"buffer_load_dwordx4 v3, s[8:11], s21 offen offset:{1024*i} lds" if not reg else f"buffer_load_dwordx4 v[{16+4*i}:{19+4*i}], v3, s[8:11], s21 offen offset:{1024*i}")
    A("L_skip:\ns_memtime s[30:31]\ns_waitcnt lgkmcnt(0)")
    A("ds_write_b32 v4, v0" if op == 'w' else "ds_read_b32 v5, v4")
    A("s_waitcnt lgkmcnt(0)\ns_memtime s[32:33]\ns_waitcnt vmcnt(0) lgkmcnt(0)\ns_memtime s[34:35]\ns_waitcnt lgkmcnt(0)")
    A(f"s_mul_i32 s25, s2, 4\ns_add_u32 s25, s25, s20\ns_lshl_b32 s25, s25, 3\nv_mov_b32 v8, s25\ns_sub_u32 s26, s32, s30\nv_mov_b32 v10, s26\ns_sub_u32 s26, s34, s30\nv_mov_b32 v11, s26")
    A("buffer_store_dwordx2 v[10:11], v8, s[12:15], 0 offen\ns_waitcnt vmcnt(0)\nL_end:")
    return header(65536) + "\n".join(L) + footer(vgpr=64, acc=64)
if __name__ == "__main__":
    names = []
    for nm, kw in {'w0': dict(ndma=0, op='w'), 'w4': dict(ndma=4, op='w'), 'r4': dict(ndma=4, op='r'), 'w4o': dict(ndma=4, op='w', other=True), 'w4reg': dict(ndma=4, op='w', reg=True)}.items():
        n = f"dw_{nm}.s"; open(n, "w").write(gen(**kw)); names.append(n)
    print(" ".join(names))
```
